```python
import torch

def _softmax(x, axis=-1):
    return torch.softmax(x, dim=axis)
def _gelu(x):
    return torch.nn.functional.gelu(x, approximate="tanh")
def _silu(x):
    return torch.nn.functional.silu(x)
def _sigmoid(x):
    return torch.sigmoid(x)
def _layernorm(x, axis=-1, eps=1e-5):
    m = x.mean(dim=axis, keepdim=True)
    v = x.var(dim=axis, keepdim=True, unbiased=False)
    return (x - m) / torch.sqrt(v + eps)
def _scatter_add(tgt, idx, src, axis=0):
    return tgt.clone().index_add_(axis, idx, src)
def _segment_sum(src, seg, n):
    out = torch.zeros((n,) + src.shape[1:], dtype=src.dtype)
    return out.index_add_(0, seg, src)
def _pad(x, pw):
    flat = tuple(v for pair in reversed(pw) for v in pair)
    return torch.nn.functional.pad(x, flat)

kernel_name = 'standalone__rezero__sampling'

def setup_inputs():

    _w = (lambda a: (lambda t: t.to(torch.bfloat16) if t.is_floating_point() else t)(torch.as_tensor(a)))
    B, S, D = 1024, 8, 512
    return {
        "x": _w((lambda *s: torch.randn(*s, dtype=torch.bfloat16) * 0.05)(B, S, D)),
        "fx": _w((lambda *s: torch.randn(*s, dtype=torch.bfloat16) * 1.6)(B, S, D)),
        "alpha": _w((lambda *s: torch.randn(*s, dtype=torch.bfloat16) * 1.6)(1) * 0.1),
    }

def reference(x, fx, alpha):
    return x + alpha * fx
```

```python
import sys, argparse

HEADER = """; Kernarg layout for this problem (48 bytes, ptrs only, base s[0:1]):
; grid=ceil(out_elems/256), lds=0). Harness parses it; keep it on one line.
; @launch grid=({grid},1,1) block=({block},1,1) lds=0
.amdgcn_target "amdgcn-amd-amdhsa--gfx950"
.text
.globl standalone__rezero__sampling_kernel
.p2align 8
.type standalone__rezero__sampling_kernel,@function
standalone__rezero__sampling_kernel:
"""

FOOTER = """L_done:
    s_endpgm
.section .rodata,"a"
.p2align 6
.amdhsa_kernel standalone__rezero__sampling_kernel
  .amdhsa_next_free_vgpr {vgpr}
  .amdhsa_next_free_sgpr {sgpr}
  .amdhsa_accum_offset {acc}
  .amdhsa_group_segment_fixed_size 0
  .amdhsa_kernarg_size 48
  .amdhsa_user_sgpr_count 2
  .amdhsa_user_sgpr_kernarg_segment_ptr 1
  .amdhsa_system_sgpr_workgroup_id_x 1
  .amdhsa_float_denorm_mode_32 3
.end_amdhsa_kernel
"""

TOTAL = 1024 * 8 * 512 * 2


def compute(x, f, t, out):
    a = t
    b = t + 8
    for i in range(4):
        out.append(f"    v_lshlrev_b32 v{a+2*i}, 16, v{f+i}")
        out.append(f"    v_and_b32 v{a+2*i+1}, 0xffff0000, v{f+i}")
    for i in range(4):
        out.append(f"    v_pk_mul_f32 v[{a+2*i}:{a+2*i+1}], v[{a+2*i}:{a+2*i+1}], s[12:13]")
    for i in range(4):
        out.append(f"    v_cvt_pk_bf16_f32 v{f+i}, v{a+2*i}, v{a+2*i+1}")
    for i in range(4):
        out.append(f"    v_lshlrev_b32 v{a+2*i}, 16, v{f+i}")
        out.append(f"    v_and_b32 v{a+2*i+1}, 0xffff0000, v{f+i}")
    return a, b


def compute2(x, f, t, out):
    a = t
    b = t + 8
    for i in range(4):
        out.append(f"    v_lshlrev_b32 v{b+2*i}, 16, v{x+i}")
        out.append(f"    v_and_b32 v{b+2*i+1}, 0xffff0000, v{x+i}")
    for i in range(4):
        out.append(f"    v_pk_add_f32 v[{a+2*i}:{a+2*i+1}], v[{a+2*i}:{a+2*i+1}], v[{b+2*i}:{b+2*i+1}]")
    for i in range(4):
        out.append(f"    v_cvt_pk_bf16_f32 v{x+i}, v{a+2*i}, v{a+2*i+1}")


def gen(block=256, U=1, ld="", st="", layout="wave", order="fx_first"):
    per_wg = block * 16 * U
    grid = TOTAL // per_wg
    assert grid * per_wg == TOTAL
    o = []
    o.append("    s_load_dwordx8 s[4:11], s[0:1], 0")
    o.append(f"    s_cmp_ge_u32 s2, {grid}")
    o.append("    s_cbranch_scc1 L_done")
    nad = 1
    offs = []
    if layout == "wave":
        o.append(f"    s_mul_i32 s3, s2, {per_wg}")
        if U == 1:
            o.append("    v_lshl_add_u32 v1, v0, 4, s3")
        else:
            o.append("    v_lshrrev_b32 v2, 6, v0")
            o.append("    v_and_b32 v1, 63, v0")
            o.append("    v_lshlrev_b32 v1, 4, v1")
            o.append(f"    v_mul_u32_u24 v2, {U*1024}, v2")
            o.append("    v_add3_u32 v1, v1, v2, s3")
        for u in range(U):
            g = u // 4
            offs.append((1 + g, (u % 4) * 1024))
        ng = (U + 3) // 4
        for g in range(1, ng):
            o.append(f"    v_add_u32 v{1+g}, {4096*g}, v1")
        nad = ng
    elif layout == "wg":
        o.append(f"    s_mul_i32 s3, s2, {per_wg}")
        o.append("    v_lshl_add_u32 v1, v0, 4, s3")
        for u in range(U):
            offs.append((1 + u, 0))
            if u:
                o.append(f"    v_add_u32 v{1+u}, {block*16*u}, v1")
        nad = U
    elif layout == "grid":
        o.append(f"    s_mul_i32 s3, s2, {block*16}")
        o.append("    v_lshl_add_u32 v1, v0, 4, s3")
        for u in range(U):
            offs.append((1 + u, 0))
            if u:
                o.append(f"    v_add_u32 v{1+u}, {TOTAL//U*u}, v1")
        nad = U
    base = 1 + nad
    base = (base + 1) // 2 * 2
    X = [base + 8 * u for u in range(U)]
    F = [base + 8 * u + 4 for u in range(U)]
    T = base + 8 * U
    o.append("    s_waitcnt lgkmcnt(0)")
    o.append("    s_load_dword s12, s[8:9], 0")
    for u in range(U):
        a, im = offs[u]
        ims = f" offset:{im}" if im else ""
        o.append(f"    global_load_dwordx4 v[{F[u]}:{F[u]+3}], v{a}, s[6:7]{ims} {ld}".rstrip())
        o.append(f"    global_load_dwordx4 v[{X[u]}:{X[u]+3}], v{a}, s[4:5]{ims} {ld}".rstrip())
    o.append("    s_waitcnt lgkmcnt(0)")
    o.append("    s_lshl_b32 s12, s12, 16")
    o.append("    s_mov_b32 s13, s12")
    for u in range(U):
        n = (2 * U - 1 - 2 * u) + u
        o.append(f"    s_waitcnt vmcnt({n})")
        compute(X[u], F[u], T, o)
        n = (2 * U - 2 - 2 * u) + u
        o.append(f"    s_waitcnt vmcnt({n})")
        compute2(X[u], F[u], T, o)
        a, im = offs[u]
        ims = f" offset:{im}" if im else ""
        o.append(f"    global_store_dwordx4 v{a}, v[{X[u]}:{X[u]+3}], s[10:11]{ims} {st}".rstrip())
    vg = T + 16
    vg4 = (vg + 3) // 4 * 4
    return HEADER.format(grid=grid, block=block) + "\n".join(o) + "\n" + FOOTER.format(vgpr=vg, sgpr=16, acc=vg4)


if __name__ == "__main__":
    p = argparse.ArgumentParser()
    p.add_argument("--block", type=int, default=256)
    p.add_argument("--U", type=int, default=1)
    p.add_argument("--ld", default="")
    p.add_argument("--st", default="")
    p.add_argument("--layout", default="wave")
    p.add_argument("-o", default="-")
    a = p.parse_args()
    s = gen(a.block, a.U, a.ld, a.st, a.layout)
    if a.o == "-":
        print(s)
    else:
        open(a.o, "w").write(s)
```

```python
import sys, argparse
from gen import HEADER, FOOTER, TOTAL, compute, compute2

def gen(block=256, U=1, ld="", st="", layout="wave", instr=False, endwait=False, remap=False, align=False):
    per_wg = block * 16 * U
    grid = TOTAL // per_wg
    assert grid * per_wg == TOTAL
    o = []
    if instr:
        o.append("    s_memrealtime s[20:21]")
    o.append("    s_load_dwordx8 s[4:11], s[0:1], 0")
    if instr:
        o.append("    s_load_dwordx2 s[18:19], s[0:1], 40")
    o.append(f"    s_cmp_ge_u32 s2, {grid}")
    o.append("    s_cbranch_scc1 L_done")
    offs = []
    sid = "s2"
    if remap:
        o.append("    s_and_b32 s14, s2, 7")
        o.append(f"    s_mul_i32 s14, s14, {grid//8}")
        o.append("    s_lshr_b32 s15, s2, 3")
        o.append("    s_add_u32 s2, s14, s15")
    if layout == "wave":
        o.append(f"    s_mul_i32 s3, s2, {per_wg}")
        if U == 1:
            o.append("    v_lshl_add_u32 v1, v0, 4, s3")
        else:
            o.append("    v_lshrrev_b32 v2, 6, v0")
            o.append("    v_and_b32 v1, 63, v0")
            o.append("    v_lshlrev_b32 v1, 4, v1")
            o.append(f"    v_mul_u32_u24 v2, {U*1024}, v2")
            o.append("    v_add3_u32 v1, v1, v2, s3")
        for u in range(U):
            g = u // 4
            offs.append((1 + g, (u % 4) * 1024))
        ng = (U + 3) // 4
        for g in range(1, ng):
            o.append(f"    v_add_u32 v{1+g}, {4096*g}, v1")
        nad = ng
    elif layout == "wg":
        o.append(f"    s_mul_i32 s3, s2, {per_wg}")
        o.append("    v_lshl_add_u32 v1, v0, 4, s3")
        for u in range(U):
            offs.append((1 + u, 0))
            if u:
                o.append(f"    v_add_u32 v{1+u}, {block*16*u}, v1")
        nad = U
    elif layout == "grid":
        o.append(f"    s_mul_i32 s3, s2, {block*16}")
        o.append("    v_lshl_add_u32 v1, v0, 4, s3")
        for u in range(U):
            offs.append((1 + u, 0))
            if u:
                o.append(f"    v_add_u32 v{1+u}, {TOTAL//U*u}, v1")
        nad = U
    base = 1 + nad
    base = (base + 1) // 2 * 2
    X = [base + 8 * u for u in range(U)]
    F = [base + 8 * u + 4 for u in range(U)]
    T = base + 8 * U
    o.append("    s_waitcnt lgkmcnt(0)")
    if instr:
        o.append("    s_memrealtime s[22:23]")
    o.append("    s_load_dword s12, s[8:9], 0")
    for u in range(U):
        a, im = offs[u]
        ims = f" offset:{im}" if im else ""
        o.append(f"    global_load_dwordx4 v[{F[u]}:{F[u]+3}], v{a}, s[6:7]{ims} {ld}".rstrip())
        o.append(f"    global_load_dwordx4 v[{X[u]}:{X[u]+3}], v{a}, s[4:5]{ims} {ld}".rstrip())
    o.append("    s_waitcnt lgkmcnt(0)")
    if instr:
        o.append("    s_memrealtime s[24:25]")
    o.append("    s_lshl_b32 s12, s12, 16")
    o.append("    s_mov_b32 s13, s12")
    for u in range(U):
        n = (2 * U - 1 - 2 * u) + u
        o.append(f"    s_waitcnt vmcnt({n})")
        if instr and u == 0:
            o.append("    s_memrealtime s[26:27]")
        compute(X[u], F[u], T, o)
        n = (2 * U - 2 - 2 * u) + u
        o.append(f"    s_waitcnt vmcnt({n})")
        if instr and u == U - 1:
            o.append("    s_memrealtime s[28:29]")
        compute2(X[u], F[u], T, o)
        a, im = offs[u]
        ims = f" offset:{im}" if im else ""
        o.append(f"    global_store_dwordx4 v{a}, v[{X[u]}:{X[u]+3}], s[10:11]{ims} {st}".rstrip())
    vg = T + 16
    if instr:
        o.append("    s_waitcnt vmcnt(0)")
        o.append("    s_memrealtime s[30:31]")
        o.append("    s_getreg_b32 s32, hwreg(HW_REG_XCC_ID)")
        o.append("    s_getreg_b32 s33, hwreg(HW_REG_HW_ID)")
        o.append("    s_waitcnt lgkmcnt(0)")
        o.append("    v_lshrrev_b32 v2, 6, v0")
        o.append(f"    s_mul_i32 s3, s2, {block//64}")
        o.append("    v_add_u32 v2, s3, v2")
        o.append("    v_lshlrev_b32 v2, 6, v2")
        o.append("    v_and_b32 v3, 63, v0")
        o.append("    v_cmp_eq_u32 vcc, 0, v3")
        o.append("    s_and_saveexec_b64 s[34:35], vcc")
        regs = [20, 22, 24, 26, 28, 30, 32, 33]
        b = T
        for i, r in enumerate(regs):
            o.append(f"    v_mov_b32 v{b+i}, s{r}")
        o.append(f"    global_store_dwordx4 v2, v[{b}:{b+3}], s[18:19]")
        o.append(f"    global_store_dwordx4 v2, v[{b+4}:{b+7}], s[18:19] offset:16")
    elif endwait:
        o.append("    s_waitcnt vmcnt(0)")
    vg4 = (vg + 3) // 4 * 4
    hdr = HEADER.format(grid=grid, block=block)
    if align:
        hdr = hdr.replace(".p2align 8\n", ".p2align 12\n.p2align 8\n")
    return hdr + "\n".join(o) + "\n" + FOOTER.format(vgpr=vg, sgpr=40 if instr else 16, acc=vg4)


if __name__ == "__main__":
    p = argparse.ArgumentParser()
    p.add_argument("--block", type=int, default=256)
    p.add_argument("--U", type=int, default=1)
    p.add_argument("--ld", default="")
    p.add_argument("--st", default="")
    p.add_argument("--layout", default="wave")
    p.add_argument("--instr", action="store_true")
    p.add_argument("--remap", action="store_true")
    p.add_argument("--align", action="store_true")
    p.add_argument("-o", default="-")
    a = p.parse_args()
    s = gen(a.block, a.U, a.ld, a.st, a.layout, a.instr, False, a.remap, a.align)
    if a.o == "-":
        print(s)
    else:
        open(a.o, "w").write(s)
```

```python
from gen import HEADER, FOOTER, TOTAL, compute, compute2
def gen(which, K=4, BASE=1000, only=None, U=4, block=256, st="", ld=""):
    per_wg=block*16*U; grid=TOTAL//per_wg
    o=[]
    o.append("    s_memrealtime s[20:21]")
    o.append("    s_load_dwordx8 s[4:11], s[0:1], 0")
    o.append(f"    s_cmp_ge_u32 s2, {grid}")
    o.append("    s_cbranch_scc1 L_done")
    o.append(f"    s_mul_i32 s3, s2, {per_wg}")
    o.append("    v_lshrrev_b32 v2, 6, v0")
    o.append("    v_and_b32 v1, 63, v0")
    o.append("    v_lshlrev_b32 v1, 4, v1")
    o.append(f"    v_mul_u32_u24 v2, {U*1024}, v2")
    o.append("    v_add3_u32 v1, v1, v2, s3")
    base=2
    X=[base+8*u for u in range(U)]; F=[base+8*u+4 for u in range(U)]; T=base+8*U
    o.append("    s_waitcnt lgkmcnt(0)")
    if which==1: o.append("    s_memrealtime s[22:23]")
    o.append("    s_load_dword s12, s[8:9], 0")
    for u in range(U):
        ims=f" offset:{u*1024}" if u else ""
        o.append(f"    global_load_dwordx4 v[{F[u]}:{F[u]+3}], v1, s[6:7]{ims} {ld}".rstrip())
        o.append(f"    global_load_dwordx4 v[{X[u]}:{X[u]+3}], v1, s[4:5]{ims} {ld}".rstrip())
    o.append("    s_waitcnt lgkmcnt(0)")
    o.append("    s_lshl_b32 s12, s12, 16")
    o.append("    s_mov_b32 s13, s12")
    for u in range(U):
        o.append(f"    s_waitcnt vmcnt({(2*U-1-2*u)+u})")
        if which==2 and u==0: o.append("    s_memrealtime s[22:23]")
        compute(X[u],F[u],T,o)
        o.append(f"    s_waitcnt vmcnt({(2*U-2-2*u)+u})")
        if which==3 and u==U-1: o.append("    s_memrealtime s[22:23]")
        compute2(X[u],F[u],T,o)
        ims=f" offset:{u*1024}" if u else ""
        o.append(f"    global_store_dwordx4 v1, v[{X[u]}:{X[u]+3}], s[10:11]{ims} {st}".rstrip())
    o.append("    s_waitcnt vmcnt(0)")
    if which==4: o.append("    s_memrealtime s[22:23]")
    o.append("    s_waitcnt lgkmcnt(0)")
    if which:
        o.append("    s_sub_u32 s24, s22, s20")
        o.append(f"    s_mul_i32 s24, s24, {K}")
        if only is not None:
            o.append(f"    s_cmp_eq_u32 s2, {only}")
            o.append("    s_cselect_b32 s24, s24, 0")
        o.append(f"    s_add_u32 s24, s24, {BASE}")
    else:
        o.append(f"    s_mov_b32 s24, {BASE}")
    o.append("L_spin:")
    o.append("    s_sleep 1")
    o.append("    s_memrealtime s[26:27]")
    o.append("    s_waitcnt lgkmcnt(0)")
    o.append("    s_sub_u32 s26, s26, s20")
    o.append("    s_cmp_lt_u32 s26, s24")
    o.append("    s_cbranch_scc1 L_spin")
    vg=T+16
    hdr=HEADER.format(grid=grid,block=block).replace(".p2align 8\n",".p2align 12\n.p2align 8\n")
    return hdr+"\n".join(o)+"\n"+FOOTER.format(vgpr=vg,sgpr=40,acc=(vg+3)//4*4)
for w in range(5):
    open(f"v/p_all{w}.s","w").write(gen(w))
for w in range(1,5):
    open(f"v/p_wg0_{w}.s","w").write(gen(w,only=0))
```

```python
U = 4
hdr = """; Kernarg layout for this problem (48 bytes, ptrs only, base s[0:1]):
; @launch grid=(512,1,1) block=(256,1,1) lds=0
;
.amdgcn_target "amdgcn-amd-amdhsa--gfx950"
.text
.globl standalone__rezero__sampling_kernel
.p2align 12                                    ; keep the whole kernel inside one 4-KiB instruction page
.p2align 8
.type standalone__rezero__sampling_kernel,@function
standalone__rezero__sampling_kernel:
"""
o = []
A = o.append
A("    s_load_dwordx8 s[4:11], s[0:1], 0")
A("    s_cmp_ge_u32 s2, 512")
A("    s_cbranch_scc1 L_done")
A("    s_lshl_b32 s3, s2, 14")
A("    v_and_b32 v1, 63, v0                       ; lane")
A("    v_lshrrev_b32 v2, 6, v0")
A("    v_lshlrev_b32 v1, 4, v1                    ; lane * 16")
A("    v_lshlrev_b32 v2, 12, v2                   ; wave * 4096")
A("    v_add3_u32 v1, v1, v2, s3")
A("    s_waitcnt lgkmcnt(0)")
X = [2 + 8 * u for u in range(U)]
F = [6 + 8 * u for u in range(U)]
T = 34
for u in range(U):
    off = f" offset:{u*1024}" if u else ""
    A(f"    global_load_dwordx4 v[{F[u]}:{F[u]+3}], v1, s[6:7]{off} nt")
    A(f"    global_load_dwordx4 v[{X[u]}:{X[u]+3}], v1, s[4:5]{off} nt")
A("    s_load_dword s12, s[8:9], 0")
A("    s_waitcnt lgkmcnt(0)")
A("    s_lshl_b32 s12, s12, 16")
A("    s_mov_b32 s13, s12")
for u in range(U):
    x, f = X[u], F[u]
    A(f"    s_waitcnt vmcnt({2*U-1-2*u+u})")
    for i in range(4):
        A(f"    v_lshlrev_b32 v{T+2*i}, 16, v{f+i}")
        A(f"    v_and_b32 v{T+2*i+1}, 0xffff0000, v{f+i}")
    for i in range(4):
        A(f"    v_pk_mul_f32 v[{T+2*i}:{T+2*i+1}], v[{T+2*i}:{T+2*i+1}], s[12:13]")
    for i in range(4):
        A(f"    v_cvt_pk_bf16_f32 v{f+i}, v{T+2*i}, v{T+2*i+1}")
    for i in range(4):
        A(f"    v_lshlrev_b32 v{T+2*i}, 16, v{f+i}")
        A(f"    v_and_b32 v{T+2*i+1}, 0xffff0000, v{f+i}")
    A(f"    s_waitcnt vmcnt({2*U-2-2*u+u})")
    for i in range(4):
        A(f"    v_lshlrev_b32 v{T+8+2*i}, 16, v{x+i}")
        A(f"    v_and_b32 v{T+8+2*i+1}, 0xffff0000, v{x+i}")
    for i in range(4):
        A(f"    v_pk_add_f32 v[{T+2*i}:{T+2*i+1}], v[{T+2*i}:{T+2*i+1}], v[{T+8+2*i}:{T+8+2*i+1}]")
    for i in range(4):
        A(f"    v_cvt_pk_bf16_f32 v{x+i}, v{T+2*i}, v{T+2*i+1}")
    off = f" offset:{u*1024}" if u else ""
    A(f"    global_store_dwordx4 v1, v[{x}:{x+3}], s[10:11]{off}")
ftr = """L_done:
    s_endpgm
.section .rodata,"a"
.p2align 6
.amdhsa_kernel standalone__rezero__sampling_kernel
  .amdhsa_next_free_vgpr 50
  .amdhsa_next_free_sgpr 16
  .amdhsa_accum_offset 52
  .amdhsa_group_segment_fixed_size 0
  .amdhsa_kernarg_size 48
  .amdhsa_user_sgpr_count 2
  .amdhsa_user_sgpr_kernarg_segment_ptr 1
  .amdhsa_system_sgpr_workgroup_id_x 1
  .amdhsa_float_denorm_mode_32 3
.end_amdhsa_kernel
"""
open("standalone__rezero__sampling.s", "w").write(hdr + "\n".join(o) + "\n" + ftr)
```
